```python
import torch

def _softmax(x, axis=-1):
    return torch.softmax(x, dim=axis)
def _gelu(x):
    return torch.nn.functional.gelu(x, approximate="tanh")
def _silu(x):
    return torch.nn.functional.silu(x)
def _sigmoid(x):
    return torch.sigmoid(x)
def _layernorm(x, axis=-1, eps=1e-5):
    m = x.mean(dim=axis, keepdim=True)
    v = x.var(dim=axis, keepdim=True, unbiased=False)
    return (x - m) / torch.sqrt(v + eps)
def _scatter_add(tgt, idx, src, axis=0):
    return tgt.clone().index_add_(axis, idx, src)
def _segment_sum(src, seg, n):
    out = torch.zeros((n,) + src.shape[1:], dtype=src.dtype)
    return out.index_add_(0, seg, src)
def _pad(x, pw):
    flat = tuple(v for pair in reversed(pw) for v in pair)
    return torch.nn.functional.pad(x, flat)

kernel_name = 'recurrent_scan__sliding_block_cached__moe_arch_mod__prompt'

def setup_inputs():

    _w = (lambda a: (lambda t: t.to(torch.bfloat16) if t.is_floating_point() else t)(torch.as_tensor(a)))
    def _A_setup():
        B, Sq, D = 1, 2048, 448
        Hq, Hkv, Sk, Dh = 16, 8, 2048, 256
        assert Hq % Hkv == 0, (Hq, Hkv)
        return {
            "x": _w((lambda *s: torch.randn(*s, dtype=torch.bfloat16) * 0.05)(B, Sq, D)),
            "k_cache": _w((lambda *s: torch.randn(*s, dtype=torch.bfloat16) * 0.8)(B, Hkv, Sk, Dh)),
            "v_cache": _w((lambda *s: torch.randn(*s, dtype=torch.bfloat16) * 0.2)(B, Hkv, Sk, Dh)),
            "wq": _w((lambda *s: torch.randn(*s, dtype=torch.bfloat16) * 0.8)(D, Hq * Dh) * (D ** -0.5)),
            "wo": _w((lambda *s: torch.randn(*s, dtype=torch.bfloat16) * 0.2)(Hq * Dh, D) * ((Hq * Dh) ** -0.5)),
        }
    _A_in = _A_setup()

    def _B_setup():
        B, S, D, F, C = 1, 2048, 448, 1792, 2
        return {
            "x": _w((lambda *s: torch.randn(*s, dtype=torch.bfloat16) * 0.05)(B, S, D)),
            "w_r": _w((lambda *s: torch.randn(*s, dtype=torch.bfloat16) * 0.2)(D)),
            "w_gate": _w((lambda *s: torch.randn(*s, dtype=torch.bfloat16) * 0.1)(D, F)),
            "w_up": _w((lambda *s: torch.randn(*s, dtype=torch.bfloat16) * 0.1)(D, F)),
            "w_down": _w((lambda *s: torch.randn(*s, dtype=torch.bfloat16) * 0.1)(F, D)),
        }
    _B_in = _B_setup()

    return {
        "A_x": _A_in["x"],
        "A_k_cache": _A_in["k_cache"],
        "A_v_cache": _A_in["v_cache"],
        "A_wq": _A_in["wq"],
        "A_wo": _A_in["wo"],
        "B_x": _B_in["x"],
        "B_w_r": _B_in["w_r"],
        "B_w_gate": _B_in["w_gate"],
        "B_w_up": _B_in["w_up"],
        "B_w_down": _B_in["w_down"],
    }

def reference(A_x, A_k_cache, A_v_cache, A_wq, A_wo, B_x, B_w_r, B_w_gate, B_w_up, B_w_down):
    def _A_ref(x, k_cache, v_cache, wq, wo):
        B, Sq, D = x.shape
        Hq, Dh = 16, 256
        Hkv, Sk = k_cache.shape[1], k_cache.shape[2]
        W = min(4096, max(256, Sk // 4))
        rep = Hq // Hkv
        q = (lambda x, *d: x.permute(*d))((x @ wq).reshape(B, Sq, Hq, Dh), 0, 2, 1, 3)
        k = (lambda x, n, axis: torch.repeat_interleave(x, n, dim=axis))(k_cache[:, :, Sk - W:, :], rep, axis=1)
        v = (lambda x, n, axis: torch.repeat_interleave(x, n, dim=axis))(v_cache[:, :, Sk - W:, :], rep, axis=1)
        scores = torch.einsum("bhqd,bhkd->bhqk", q, k) * (Dh ** -0.5)
        p = _softmax(scores, axis=-1)
        o = torch.einsum("bhqk,bhkd->bhqd", p, v)
        return (lambda x, *d: x.permute(*d))(o, 0, 2, 1, 3).reshape(B, Sq, Hq * Dh) @ wo

    def _B_ref(x, w_r, w_gate, w_up, w_down):
        B, S, D = x.shape
        C = 2
        r = x @ w_r
        idx = torch.argsort(-r, axis=-1)[:, :C]
        idx_e = (lambda x, n, axis: torch.repeat_interleave(x, n, dim=axis))(idx.reshape(B, C, 1), D, axis=2)
        x_sel = (lambda x, i, axis: torch.take_along_dim(x, i, dim=axis))(x, idx_e, axis=1)
        g = _silu(x_sel @ w_gate)
        u = x_sel @ w_up
        y = (g * u) @ w_down
        r_sel = _sigmoid((lambda x, i, axis: torch.take_along_dim(x, i, dim=axis))(r, idx, axis=1))
        y = y * r_sel.reshape(B, C, 1)
        b_off = (torch.arange(B) * S).reshape(B, 1)
        flat_idx = (idx + b_off).reshape(B * C)
        zero = (x * 0.0).reshape(B * S, D)
        upd = _scatter_add(zero, flat_idx, y.reshape(B * C, D), axis=0)
        return x + upd.reshape(B, S, D)

    x = A_x
    xn = _layernorm(x, axis=-1)
    s = _A_ref(xn, A_k_cache, A_v_cache, A_wq, A_wo)
    g = _silu(_B_ref(xn, B_w_r, B_w_gate, B_w_up, B_w_down))
    return x + s * g
```

```python
import sys
sys.path.insert(0, 'dev')
from core import *
import k2
KN = "recurrent_scan__sliding_block_cached__moe_arch_mod__prompt"

def kd(name, vgpr, acc):
    return f"""
.p2align 6
.amdhsa_kernel {name}
  .amdhsa_next_free_vgpr {vgpr}
  .amdhsa_next_free_sgpr 102
  .amdhsa_accum_offset {acc}
  .amdhsa_group_segment_fixed_size 0
  .amdhsa_kernarg_size 104
  .amdhsa_user_sgpr_count 2
  .amdhsa_user_sgpr_kernarg_segment_ptr 1
  .amdhsa_system_sgpr_workgroup_id_x 1
.end_amdhsa_kernel
"""

def assemble(kernels, pad_to=None):
    s = ""
    if len(kernels) == 1:
        n, grid, block, lds, *_ = kernels[0]
        s += f"; @launch grid=({grid},1,1) block=({block},1,1) lds={lds}\n"
    else:
        for n, grid, block, lds, *_ in kernels:
            s += f"; @launch kernel={n} grid=({grid},1,1) block=({block},1,1) lds={lds}\n"
    s += '.amdgcn_target "amdgcn-amd-amdhsa--gfx950"\n.text\n'
    for n, grid, block, lds, lines, vg, acc in kernels:
        l, nfix, nn = finalize(lines)
        print(f"{n}: {len(l)} lines, hazard fixes {nfix}, align nops {nn}", file=sys.stderr)
        s += f".globl {n}\n.p2align 8\n.type {n},@function\n{n}:\n" + "\n".join(l) + "\n"
    s += ".p2align 8\n" + f".fill {pad_to or 4096}, 4, 0xbf800000\n"
    s += '.section .rodata,"a"\n'
    for n, grid, block, lds, lines, vg, acc in kernels:
        s += kd(n, vg, acc)
    return s

if __name__ == "__main__":
    dbg = sys.argv[1] if len(sys.argv) > 1 else None
    if dbg == "none": dbg = None
    L, info = k2.gen_k2(KN + "_kernel", dbg=dbg, verbose=len(sys.argv) > 2)
    c = info["costs"]
    import numpy as np
    c = np.array(c)
    print("minlead", info["minlead"], "mean cost", c.mean(), "sum max(32,c)", np.maximum(c, 32).sum(), "over", (c > 32).sum())
    for a in range(0, len(c), 32):
        print(a, " ".join("%2d" % x for x in c[a:a+32]))
    src = assemble([(KN + "_kernel", 256, 256, 163840, L, 512, 256)], pad_to=(16384 if dbg else 4096))
    open("k2.s", "w").write(src)
```

```python
import re
from asmgen import align_fix, sizes_of

TRANS = ("v_exp_f32", "v_log_f32", "v_rcp_f32", "v_rsq_f32", "v_sqrt_f32")


def regs_of(tok):
    tok = tok.strip()
    tok = tok.lstrip("-").strip("|")
    m = re.fullmatch(r"([vas])\[(\d+):(\d+)\]", tok)
    if m:
        return [(m.group(1), i) for i in range(int(m.group(2)), int(m.group(3)) + 1)]
    m = re.fullmatch(r"([vas])(\d+)", tok)
    if m:
        return [(m.group(1), int(m.group(2)))]
    if tok in ("vcc", "vcc_lo", "vcc_hi"):
        return [("s", "vcc")]
    if tok == "m0":
        return [("s", "m0")]
    if tok in ("exec", "exec_lo", "exec_hi"):
        return [("s", "exec")]
    return []


class Ins:
    __slots__ = ("text", "op", "kind", "dst", "src", "passes", "A", "B", "C", "trans", "dot", "wide", "sdwa", "nop", "dpp")

    def __init__(self, text):
        self.text = text
        c = text.split(";")[0].strip()
        parts = c.split(None, 1)
        op = parts[0]
        for suf in ("_e32", "_e64"):
            if op.endswith(suf):
                op = op[: -len(suf)]
        self.op = op
        rest = parts[1] if len(parts) > 1 else ""
        ops = [o.strip() for o in rest.split(",")]
        mods = ""
        if ops:
            sp = ops[-1].split(None, 1)
            if len(sp) > 1:
                ops[-1] = sp[0]
                mods = sp[1]
        self.dst = []
        self.src = []
        self.passes = 0
        self.A = self.B = self.C = []
        self.trans = op in TRANS
        self.dot = op.startswith("v_dot")
        self.wide = False
        self.sdwa = "sdwa" in op or "dst_sel" in mods
        self.dpp = "dpp" in op or "row_" in mods or "quad_perm" in mods
        self.nop = 0
        R = [regs_of(o) for o in ops]
        if op.startswith("v_mfma"):
            self.kind = "mfma"
            self.passes = 8 if "32x32x16" in op else 4
            self.dst = R[0]
            self.A, self.B, self.C = R[1], R[2], R[3]
            self.src = R[1] + R[2] + R[3]
        elif op.startswith("v_"):
            self.kind = "valu"
            if op.startswith("v_permlane") and "swap" in op:
                self.dst = R[0] + R[1]
                self.src = R[0] + R[1]
            elif op.startswith("v_cmp"):
                self.dst = R[0]
                self.src = sum(R[1:], [])
            elif "_co_" in op:
                self.dst = R[0] + R[1]
                self.src = sum(R[2:], [])
            elif op == "v_nop":
                pass
            else:
                self.dst = R[0]
                self.src = sum(R[1:], [])
                if op.startswith("v_fmac") or op.startswith("v_dot2c") or self.dpp:
                    self.src = self.src + R[0]
                if op == "v_cndmask_b32" and len(ops) == 3:
                    self.src = self.src + [("s", "vcc")]
        elif op.startswith("ds_read") or op.startswith("ds_bpermute") or op.startswith("ds_swizzle"):
            self.kind = "ds"
            self.dst = R[0]
            self.src = sum(R[1:], [])
        elif op.startswith("ds_"):
            self.kind = "ds"
            self.src = sum(R, [])
        elif op.startswith("buffer_load") or op.startswith("global_load"):
            self.kind = "vmem"
            if re.search(r"\blds\b", mods) or "_lds_" in op:
                self.src = sum(R, []) + [("s", "m0")]
            else:
                self.dst = R[0]
                self.src = sum(R[1:], [])
        elif op.startswith("buffer_") or op.startswith("global_"):
            self.kind = "vmem"
            self.src = sum(R, [])
            if "atomic" in op and re.search(r"\bsc0\b", mods):
                self.dst = R[0]
            if "x4" in op or "x3" in op:
                self.wide = True
                self.A = R[0] if op.startswith("buffer_") else R[1]
        elif op == "s_nop":
            self.kind = "nop"
            self.nop = int(ops[0])
        elif op.startswith("s_"):
            self.kind = "salu"
            if op.startswith(("s_waitcnt", "s_barrier", "s_branch", "s_cbranch", "s_endpgm", "s_cmp", "s_setprio", "s_sleep", "s_setpc", "s_bitcmp")):
                self.src = sum(R, [])
            else:
                self.dst = R[0]
                self.src = sum(R[1:], [])
        else:
            raise ValueError("unknown instr " + text)


def is_ins(l):
    l = l.strip()
    return bool(l) and not l.startswith(";") and not l.startswith(".") and not l.endswith(":")


def hazard_fix(lines, verbose=False):
    out = []
    t = 0
    last_mfma_t = -100
    last_mfma_p = 0
    wr = {}
    crd = {}
    strd = {}
    nfix = 0
    for l in lines:
        if not is_ins(l):
            out.append(l)
            continue
        I = Ins(l)
        tt = t
        if I.kind == "mfma":
            tt = max(tt, last_mfma_t + last_mfma_p)
        need = tt

        def req(tp, ws):
            nonlocal need
            need = max(need, tp + 1 + ws)

        for r in I.src:
            if r not in wr:
                continue
            tp, P = wr[r]
            if P.kind == "mfma":
                big = 12 if P.passes == 8 else 8
                if I.kind == "mfma":
                    if r in I.A or r in I.B:
                        req(tp, big)
                    if r in I.C:
                        if I.C == P.dst and I.passes == P.passes:
                            pass
                        else:
                            req(tp, 10 if P.passes == 8 else 6)
                else:
                    req(tp, big)
            elif P.kind == "valu":
                if r[0] == "s":
                    if I.kind == "valu":
                        req(tp, 4 if I.op.startswith(("v_readlane", "v_writelane")) else 2)
                    elif I.kind in ("vmem", "ds"):
                        req(tp, 5)
                    elif I.kind == "salu":
                        req(tp, 1)
                    if r[1] == "exec":
                        req(tp, 5)
                else:
                    if P.dot:
                        if I.op == P.op and r == (I.src[-1] if True else None) and r not in I.src[:-1]:
                            pass
                        else:
                            req(tp, 3)
                    if I.kind == "mfma":
                        req(tp, 2)
                    elif I.kind == "valu":
                        if I.op.startswith("v_permlane") or I.dpp:
                            req(tp, 2)
                        if I.op.startswith(("v_readfirstlane", "v_readlane")):
                            req(tp, 1)
                    if P.trans or P.sdwa:
                        req(tp, 1)
            elif P.kind == "salu":
                if r[1] == "m0" and I.kind in ("vmem", "ds"):
                    req(tp, 1)
        for r in I.dst:
            if r in wr:
                tp, P = wr[r]
                if P.kind == "mfma" and I.kind != "mfma":
                    req(tp, 12 if P.passes == 8 else 8)
                if P.kind == "mfma" and I.kind == "mfma" and not (I.C == P.dst):
                    req(tp, 10 if P.passes == 8 else 6)
                if P.kind == "valu" and P.dot and not (I.op == P.op):
                    req(tp, 3)
            if r in crd and I.kind != "mfma":
                tp, p = crd[r]
                req(tp, 7 if p == 8 else 3)
            if r in strd:
                req(strd[r], 2)
        if need > tt:
            n = need - t
            if verbose:
                print("hazard: +%d before %s" % (n, l))
            nfix += 1
            while n > 0:
                k = min(n, 8)
                out.append("s_nop %d" % (k - 1))
                n -= k
            tt = need
        out.append(l)
        if I.kind == "nop":
            t = tt + 1 + I.nop
        else:
            t = tt + 1
        if I.kind == "mfma":
            last_mfma_t, last_mfma_p = tt, I.passes
            for r in I.C:
                crd[r] = (tt, I.passes)
        if I.wide:
            for r in I.A:
                strd[r] = tt
        for r in I.dst:
            wr[r] = (tt, I)
    return out, nfix


class Gen:
    def __init__(self):
        self.L = []
        self.vm = 0
        self.lg = 0
        self.vm_done = 0
        self.lg_done = 0
        self.cost = 0

    def e(self, s):
        for l in s.strip("\n").split("\n"):
            l = l.strip()
            if l:
                self.L.append(l)
                if is_ins(l):
                    op = l.split()[0]
                    self.cost += 8 if (op.startswith(TRANS) or op.startswith("v_mfma")) else 4

    def vmem(self, s):
        self.e(s)
        self.vm += 1
        return self.vm

    def lds(self, s):
        self.e(s)
        self.lg += 1
        return self.lg

    def wait(self, vm=None, lg=None):
        parts = []
        if vm is not None and vm > self.vm_done:
            n = self.vm - vm
            if n <= 63:
                parts.append("vmcnt(%d)" % n)
                self.vm_done = vm
            else:
                parts.append("vmcnt(63)")
                self.vm_done = self.vm - 63
        if lg is not None and lg > self.lg_done:
            n = min(self.lg - lg, 15)
            parts.append("lgkmcnt(%d)" % n)
            self.lg_done = self.lg - n
        if parts:
            self.e("s_waitcnt " + " ".join(parts))

    def wait_all(self):
        self.e("s_waitcnt vmcnt(0) lgkmcnt(0)")
        self.vm_done = self.vm
        self.lg_done = self.lg


def finalize(lines, verbose=False):
    l2, nfix = hazard_fix(lines, verbose)
    l3, nn = align_fix(l2)
    l4, nfix2 = hazard_fix(l3)
    assert nfix2 == 0
    return l3, nfix, nn
```

```python
from core import *

MF = "v_mfma_f32_32x32x16_bf16"
LOG2E_16 = 1.4426950408889634 / 16.0
import struct
def f2u(f):
    return struct.unpack("<I", struct.pack("<f", f))[0]

WS_PART = 0
WS_STATS = 16 << 20
WS_R = WS_STATS + 65536
WS_Y = WS_STATS + 131072
WS_DBG = 32 << 20

SLOT = 17408
NSLOT = 9
WO_POS = [104448, 133120, 0, 28672, 57344]
XCH = 86016

class Buf:
    def __init__(self, name, lo, size):
        self.name, self.lo, self.hi = name, lo, lo + size
        self.dma = []
        self.first = None
        self.last = None
        self.vm_last = None
        self.issue_gap = None


def vr(a, n=1):
    return "v%d" % a if n == 1 else "v[%d:%d]" % (a, a + n - 1)
def ar(a, n=1):
    return "a%d" % a if n == 1 else "a[%d:%d]" % (a, a + n - 1)


def gen_k2(name, PF=4, NB=8, WEV=1, MO_TAIL=4, dbg=None, stamps=False, att_bar=1, verbose=False):
    g = Gen()
    e = g.e
    X0, QB, SA, QA = 16, 32, 96, 128
    P = [128, 144]
    S = [96, 176]
    NEGM = 208
    T = 240
    OUT = 128
    AB = 128
    PB = 160
    VL, VCS = 30, 31

    nst = [0]
    def stamp():
        if stamps:
            e("s_memtime s[%d:%d]" % (80 + 2 * nst[0], 81 + 2 * nst[0]))
            nst[0] += 1

    e(f"""
    s_cmp_ge_u32 s2, 256
    s_cbranch_scc1 {name}_exit
    s_load_dwordx16 s[8:23], s[0:1], 0
    s_load_dwordx8 s[24:31], s[0:1], 64
    s_load_dwordx2 s[32:33], s[0:1], 96
    """)
    stamp()
    e(f"""
    s_getpc_b64 s[34:35]
    v_lshrrev_b32 v1, 6, v0
    v_and_b32 v0, 63, v0
    s_and_b32 s64, s2, 7
    v_readfirstlane_b32 s66, v1
    s_lshr_b32 s65, s2, 3
    v_lshrrev_b32 v10, 5, v0          ; hb
    v_and_b32 v11, 31, v0             ; n
    s_and_b32 s67, s66, 1             ; hp
    s_lshr_b32 s68, s66, 1            ; th
    s_lshl_b32 s3, s65, 6
    s_lshl_b32 s4, s68, 5
    s_add_u32 s69, s3, s4             ; tok0
    v_add_u32 v12, s69, v11           ; token
    v_mul_u32_u24 v14, 896, v12
    v_lshlrev_b32 v13, 4, v10
    v_add_u32 v14, v14, v13           ; x voffset
    v_lshlrev_b32 v4, 4, v0           ; lane*16
    v_add_u32 v5, {8192-1088}, v4
    v_add_u32 v6, {2*(8192-1088)}, v4
    v_add_u32 v7, {3*(8192-1088)}, v4
    s_mul_i32 s71, s66, 4352          ; wv*4*1088
    s_mul_i32 s72, s66, 4160          ; wv*4*1040
    s_mul_i32 s73, s66, 7168
    s_mov_b32 s39, 0x20000
    s_mov_b32 s43, 0x20000
    s_mov_b32 s47, 0x20000
    s_mov_b32 s51, 0x20000
    s_mov_b32 s55, 0x20000
    s_mov_b32 s59, 0x20000
    s_mov_b32 s63, 0x20000
    s_mov_b32 s38, 1835008
    s_mov_b32 s62, 896
    s_mov_b32 s58, 0x4000000
    s_mov_b32 s74, 0xffff0000
    s_lshl_b32 s3, s64, 10
    s_lshl_b32 s4, s66, 15
    s_add_u32 s3, s3, s4
    s_sub_u32 s42, {448*8192}, s3
    s_lshl_b32 s4, s64, 20
    s_lshl_b32 s5, s66, 11
    s_add_u32 s5, s5, s4
    s_add_u32 s5, s5, {1536*512-1584} ; K offset
    s_sub_u32 s46, {8<<20}, s5
    s_lshl_b32 s6, s66, 12
    s_add_u32 s6, s6, s4
    s_add_u32 s6, s6, {1536*512-1728} ; V offset
    s_sub_u32 s50, {8<<20}, s6
    s_waitcnt lgkmcnt(0)
    s_mov_b32 s36, s8
    s_mov_b32 s37, s9
    s_add_u32 s40, s14, s3
    s_addc_u32 s41, s15, 0
    s_mov_b32 s60, s20
    s_mov_b32 s61, s21
    """)
    xl = []
    for t in range(28):
        xl.append(g.vmem(f"buffer_load_dwordx4 {vr(X0+4*t,4)}, v14, s[36:39], 0 offen offset:{32*t}"))
    e(f"""
    s_add_u32 s44, s10, s5
    s_addc_u32 s45, s11, 0
    s_add_u32 s48, s12, s6
    s_addc_u32 s49, s13, 0
    s_mov_b32 s56, s32
    s_mov_b32 s57, s33
    s_mul_i32 s3, s64, 458752
    s_mul_i32 s4, s67, {256*896+448}
    s_mul_i32 s5, s68, {16*896}
    s_add_u32 s3, s3, s4
    s_add_u32 s3, s3, s5
    s_sub_u32 s54, {4096*896}, s3
    s_add_u32 s52, s16, s3
    s_addc_u32 s53, s17, 0
    """)

    bufs = []
    seq = [0]
    def newslot(nm):
        b = Buf(nm, (seq[0] % NSLOT) * SLOT, SLOT)
        seq[0] += 1
        bufs.append(b)
        return b
    def dma4(b, srd, sw, soff, vo, stride):
        for r in range(4):
            pre = []
            if r == 0:
                pre = [f"s_add_u32 m0, {sw}, {b.lo}", f"s_mov_b32 s70, {soff}"]
            b.dma.append(pre + [f"buffer_load_dwordx4 v{vo+r}, {srd}, s70 offen offset:{r*stride} lds"])
    WQ = []
    for t in range(28):
        b = newslot(f"wq{t}")
        dma4(b, "s[40:43]", "s71", t * 131072, 4, 1088)
        WQ.append(b)
    KB = {}
    VB = {}
    order = ["S0", "S1"]
    for i in range(7):
        order += [f"P{i}"] + ([f"S{i+2}"] if i + 2 < 8 else [])
    order += ["P7"]
    for o in order:
        i = int(o[1:])
        for h in range(2):
            b = newslot(f"{'K' if o[0]=='S' else 'V'}{i}{'ab'[h]}")
            if o[0] == "S":
                dma4(b, "s[44:47]", "s72", (2 * i + h) * 32 * 512, 16, 1040)
                KB[i, h] = b
            else:
                dma4(b, "s[48:51]", "s71", (2 * i + h) * 32 * 512, 20, 1088)
                VB[i, h] = b
    WO = []
    for U in range(16):
        b = Buf(f"wo{U}", WO_POS[U % 5], 28672)
        bufs.append(b)
        for q in range(7):
            pre = []
            if q == 0:
                if U == 8:
                    pre += ["s_add_u32 s52, s52, s75", "s_addc_u32 s53, s53, s76", "s_sub_u32 s54, s54, s75"]
                pre += [f"s_add_u32 m0, s73, {b.lo}", f"s_mov_b32 s70, {(U % 8) * 32 * 896}"]
            if q == 4:
                pre += [f"s_add_u32 m0, s73, {b.lo + 4096}", "s_nop 0"]
            b.dma.append(pre + [f"buffer_load_dwordx4 v{1+q}, s[52:55], s70 offen offset:{(q&3)*1024} lds"])
        WO.append(b)

    steps = []
    def rd_tr(base, const0, const1):
        return [("ds_read_b64_tr_b16", 0, 2, base, const0), ("ds_read_b64_tr_b16", 2, 2, base, const1)]
    def add(mf, reads, b):
        i = len(steps)
        steps.append((mf, reads, b))
        if b.first is None:
            b.first = i
        b.last = i
        return i
    qorder = [(t, M) for t in range(24) for M in range(8)] + [(t, M) for M in range(8) for t in range(24, 28)]
    qdone = {}
    for (t, M) in qorder:
        acc = vr(QA + 16 * M, 16)
        c = "0" if t == 0 else acc
        b = WQ[t]
        qdone[M] = add(f"{MF} {acc}, {{A}}, {vr(X0+4*t,4)}, {c}", rd_tr(1, b.lo + M * 64, b.lo + 4352 + M * 64), b)
    start = {}
    odone = {}
    for o in order:
        i = int(o[1:])
        start[o] = len(steps)
        if o[0] == "S":
            for h in range(2):
                acc = vr(S[i & 1] + 16 * h, 16)
                b = KB[i, h]
                for t in range(16):
                    c = acc if t else ("0" if i < 2 else vr(NEGM, 16))
                    add(f"{MF} {acc}, {{A}}, {vr(QB+4*t,4)}, {c}", [("ds_read_b128", 0, 4, 24, b.lo + 32 * t)], b)
        else:
            for h in range(2):
                b = VB[i, h]
                oo = [(t, D) for t in range(2) for D in range(8)]
                if i == 7 and h == 1:
                    oo = [(t, D) for D in range(8) for t in range(2)]
                for (t, D) in oo:
                    acc = ar(16 * D, 16)
                    c = "0" if (i == 0 and h == 0 and t == 0) else acc
                    odone[D] = add(f"{MF} {acc}, {{A}}, {vr(P[i&1]+8*h+4*t,4)}, {c}",
                                   rd_tr(27, b.lo + 2 * t * 4352 + D * 64, b.lo + (2 * t + 1) * 4352 + D * 64), b)
    O0 = len(steps)
    oorder = [(u, j) for u in range(32 - MO_TAIL) for j in range(7)] + [(u, j) for j in range(7) for u in range(32 - MO_TAIL, 32)]
    outdone = {}
    ufirst = {}
    for (u, j) in oorder:
        acc = vr(OUT + 16 * j, 16)
        c = "0" if u == 0 else acc
        b = WO[u >> 1]
        B = vr(QB + 4 * u, 4) if u < 16 else ar(PB + 4 * (u - 16), 4)
        base = b.lo + (u & 1) * 14336 + j * 64
        outdone[j] = add(f"{MF} {acc}, {{A}}, {B}, {c}", rd_tr(8, base, base + 8 * 448), b)
        ufirst.setdefault(u, outdone[j])
    N = len(steps)

    bars = set()
    for t in range(0, 26, 2):
        bars.add(WQ[t].first - PF)
    k = 0
    for o in order:
        i = int(o[1:])
        for h in range(2):
            b = (KB if o[0] == "S" else VB)[i, h]
            if k % att_bar == 0:
                bars.add(b.first - PF)
            k += 1
    for U in range(16 - MO_TAIL // 2 + 1):
        bars.add(WO[U].first - PF)
    bars = sorted(bars)
    def cert_bar(b):
        return max(x for x in bars if x <= b.first - PF)
    for k, b in enumerate(bufs):
        pl = [p.last for p in bufs[:k] if p.lo < b.hi and b.lo < p.hi]
        if pl:
            m = max(pl)
            b.free = min(x for x in bars if x > m)
        else:
            b.free = -10 ** 9
        b.cert = cert_bar(b)

    fill = {}
    def at(gap, s):
        fill.setdefault(gap, []).append(s)
    def spread(ops, g0, g1, w=None):
        cost = [(8 if (isinstance(o, str) and o.startswith(TRANS)) else 4) for o in ops]
        tot = sum(cost)
        ws = [1.0] * (g1 - g0) if w is None else [w(x) for x in range(g0, g1)]
        wt = sum(ws)
        acc = 0.0
        gi = 0
        cap = ws[0] / wt * tot
        for o, c in zip(ops, cost):
            while acc + c / 2 > cap and gi < len(ws) - 1:
                gi += 1
                cap += ws[gi] / wt * tot
            at(g0 + gi, o)
            acc += c

    def prep(t):
        ops = []
        for q in range(4):
            x = X0 + 4 * t + q
            t0, t1 = 10 + 2 * (q & 1), 11 + 2 * (q & 1)
            ops += [f"v_lshlrev_b32 v{t0}, 16, v{x}", f"v_and_b32 v{t1}, s74, v{x}",
                    f"v_fma_f32 v{t0}, v{t0}, v8, v9", f"v_fma_f32 v{t1}, v{t1}, v8, v9",
                    f"v_cvt_pk_bf16_f32 v{x}, v{t0}, v{t1}"]
        return ops
    ops = []
    for t in range(2, 28):
        ops += prep(t)
    spread(ops, 0, 188)
    misc2 = f"""
    v_and_b32 v15, 31, v0
    v_lshlrev_b32 v15, 4, v15
    v_lshrrev_b32 v30, 5, v0
    v_lshlrev_b32 v31, 13, v30
    v_add_u32 v19, v15, v31
    v_add_u32 v18, 528, v19
    v_add_u32 v17, {2*528}, v19
    v_add_u32 v16, {3*528}, v19
    v_lshlrev_b32 v31, 11, v30
    v_add_u32 v23, v15, v31
    v_add_u32 v22, 576, v23
    v_add_u32 v21, {2*576}, v23
    v_add_u32 v20, {3*576}, v23
    v_and_b32 v15, 15, v0
    v_mul_u32_u24 v24, 1040, v15
    v_bfe_u32 v31, v0, 4, 1
    v_lshlrev_b32 v25, 9, v31
    v_add_u32 v24, v24, v25
    v_lshlrev_b32 v25, 4, v30
    v_add_u32 v24, v24, v25
    v_add_u32 v25, 0x10000, v24
    v_add_u32 v26, 0x20000, v24
    v_lshrrev_b32 v15, 2, v15
    v_mul_u32_u24 v27, 1088, v15
    v_lshlrev_b32 v28, 9, v30
    v_add_u32 v27, v27, v28
    v_lshlrev_b32 v28, 5, v31
    v_add_u32 v27, v27, v28
    v_and_b32 v28, 3, v0
    v_lshlrev_b32 v28, 3, v28
    v_add_u32 v27, v27, v28
    v_add_u32 v28, 0x10000, v27
    v_add_u32 v29, 0x20000, v27
    v_mov_b32 v30, 0
    """.strip().split("\n")
    spread([x.strip() for x in misc2], 34, 110)
    for M in range(8):
        ops = [f"v_cvt_pk_bf16_f32 v{QB+8*M+q}, v{QA+16*M+2*q}, v{QA+16*M+2*q+1}" for q in range(8)]
        spread(ops, qdone[M] + 3, qdone[M] + 7)
    spread([f"v_mov_b32 v{NEGM+q}, 0" for q in range(16)], 232, 242)
    misc3 = []
    for q in range(7):
        misc3 += [f"v_add_u32 v15, {64*q}, v0", "v_mul_u32_u24 v15, 2341, v15", "v_lshrrev_b32 v15, 16, v15",
                  "v_mul_u32_u24 v15, 448, v15", f"v_lshl_add_u32 v{1+q}, v0, 4, v15"]
        if q >= 4:
            misc3 += [f"v_add_u32 v{1+q}, 4096, v{1+q}"]
    misc3 += [x.strip() for x in f"""
    v_lshrrev_b32 v15, 5, v0
    v_bfe_u32 v9, v0, 2, 2
    v_lshl_add_u32 v15, v15, 2, v9
    v_mul_u32_u24 v8, 448, v15
    v_bfe_u32 v15, v0, 4, 1
    v_lshl_add_u32 v8, v15, 5, v8
    v_and_b32 v15, 1, v0
    v_lshl_add_u32 v8, v15, 4, v8
    v_bfe_u32 v15, v0, 1, 1
    v_lshl_add_u32 v8, v15, 3, v8
    v_add_u32 v8, s77, v8
    v_add_u32 v9, 0x10000, v8
    v_add_u32 v10, 0x20000, v8
    v_lshlrev_b32 v15, 4, v0
    v_add_u32 v11, s78, v15
    v_add_u32 v12, s79, v15
    v_add_u32 v14, s7, v15
    """.strip().split("\n")]
    spread(misc3, 290, 400)

    def wgt(gap):
        return 4.0 if steps[gap][1][0][0] == "ds_read_b128" else 3.0
    rare = []
    for i in range(8):
        s0 = start[f"S{i}"]
        w0 = s0 + 18 if i != 1 else start["P0"]
        w1 = start[f"S{i+1}"] + 18 if 1 <= i <= 6 else start[f"P{i}"]
        ops = []
        tile1_first = None
        for pr in range(16):
            r = S[i & 1] + 2 * pr
            t0, t1 = T + 2 * (pr & 1), T + 1 + 2 * (pr & 1)
            if pr == 8:
                tile1_first = len(ops)
            ops += [f"v_exp_f32 v{t0}, v{r}", f"v_exp_f32 v{t1}, v{r+1}"]
            if pr == 0:
                ops += ["s_nop 0", f"v_add_f32 v{VCS}, v{t0}, v{t1}"]
            else:
                ops += [f"v_add_f32 v{VCS}, v{VCS}, v{t0}", f"v_add_f32 v{VCS}, v{VCS}, v{t1}"]
            ops += [f"v_cvt_pk_bf16_f32 v{P[i&1]+pr}, v{t0}, v{t1}"]
        mid = max((w0 + w1) // 2, s0 + 34)
        spread(ops[:tile1_first], w0, mid, wgt)
        spread(ops[tile1_first:], mid, w1, wgt)
        chk = [f"v_cmp_nge_f32 vcc, 0x47800000, v{VCS}"]
        if i == 0:
            chk += [f"v_cmp_gt_f32 s[4:5], s6, v{VCS}", "s_nop 0", "s_or_b64 vcc, vcc, s[4:5]"]
        else:
            chk += ["s_nop 0"]
        chk += [f"s_cbranch_vccnz {name}_stub{i}", f"{name}_back{i}:", f"v_add_f32 v{VL}, v{VL}, v{VCS}"]
        fill.setdefault(w1, [])
        fill[w1] = chk + fill[w1]
        rare.append(i)
    p7 = start["P7"]
    spread([f"v_mov_b32 v15, v{VL}", "s_nop 0", "s_nop 0", f"v_permlane32_swap_b32 v{VL}, v15", "s_nop 0",
            f"v_add_f32 v13, v{VL}, v15", "v_rcp_f32 v13, v13"], p7 + 2, p7 + 9)
    obars = [b for b in bars if b >= O0 - PF]
    xw = {}
    prev_end = 0
    for D in range(8):
        for ee in range(2):
            u = 2 * D + ee
            ops = []
            for q in range(4):
                a = 16 * D + 8 * ee + 2 * q
                t0, t1 = T + 2 * (q & 1), T + 1 + 2 * (q & 1)
                ops += [f"v_accvgpr_read_b32 v{t0}, a{a}", f"v_accvgpr_read_b32 v{t1}, a{a+1}",
                        f"v_mul_f32 v{t0}, v{t0}, v13", f"v_mul_f32 v{t1}, v{t1}, v13",
                        f"v_cvt_pk_bf16_f32 v{QB+4*u+q}, v{t0}, v{t1}"]
            g1 = ufirst[u] - 1 if u > 0 else ufirst[u]
            g0 = max(odone[D] + 3, prev_end)
            if u >= 2:
                g0 = max(g0, g1 - 8)
            if u == 0:
                g1 = g0 + 7
            spread(ops, g0, g1)
            prev_end = g1
        gw = max(obars[D + 1], prev_end)
        assert gw < obars[D + 2] - 1
        for ee in range(2):
            u = 2 * D + ee
            at(gw + ee, ("xw", D, f"ds_write_b128 v11, {vr(QB+4*u,4)} offset:{(D&1)*8192+ee*1024}"))
            at(obars[D + 2] + ee, ("xr", D, f"ds_read_b128 {ar(PB+4*u,4)}, v12 offset:{(D&1)*8192+ee*1024}"))
        assert obars[D + 2] + 6 < ufirst[16 + 2 * D]
    assert obars[1] > VB[7, 1].last
    tail = []
    for j in range(7):
        ops = []
        d = SA + 8 * (j & 3)
        for ee in range(2):
            for q in range(4):
                r = OUT + 16 * j + 8 * ee + 2 * q
                ops.append(f"v_cvt_pk_bf16_f32 v{d+4*ee+q}, v{r}, v{r+1}")
            ops.append(("st", 0, f"buffer_store_dwordx4 {vr(d+4*ee,4)}, v14, s[56:59], s3 offen offset:{((2*j+ee)&3)*1024}",
                        (2 * j + ee) >> 2))
        g0 = outdone[j] + 3
        if g0 + MO_TAIL <= N:
            spread(ops, g0, g0 + MO_TAIL)
        else:
            tail += ops

    dq = [(b, k) for b in bufs for k in range(len(b.dma))]
    dp = [0]
    def issue_dma(gap, n):
        c = 0
        while c < n and dp[0] < len(dq):
            b, k = dq[dp[0]]
            if b.free > gap:
                break
            grp = b.dma[k]
            for s in grp[:-1]:
                e(s)
            b.vm_last = g.vmem(grp[-1])
            b.issue_gap = gap
            dp[0] += 1
            c += 1
        return c
    issue_dma(-100, 8)
    wl = []
    for t in range(28):
        wl.append(g.vmem(f"buffer_load_dwordx4 {vr(QA+4*t,4)}, v13, s[60:63], 0 offen offset:{32*t}"))
    wf = g.vmem(f"buffer_load_dwordx4 v[244:247], v4, s[60:63], 0 offen")
    e(f"""
    v_lshlrev_b32 v15, 7, v0
    s_lshl_b32 s3, s66, 14
    v_add_u32 v15, s3, v15
    v_add_u32 v248, 0x2000, v15
    """)
    g.vmem("global_load_dword v249, v15, s[34:35]")
    g.vmem("global_load_dword v249, v248, s[34:35]")
    issue_dma(-100, 100)
    e(f"""
    v_bfe_u32 v15, v0, 2, 2
    v_lshl_add_u32 v15, v10, 3, v15
    v_mul_u32_u24 v1, 1088, v15
    v_bfe_u32 v15, v0, 4, 1
    v_lshl_add_u32 v1, v15, 5, v1
    v_and_b32 v15, 1, v0
    v_lshl_add_u32 v1, v15, 4, v1
    v_bfe_u32 v15, v0, 1, 1
    v_lshl_add_u32 v1, v15, 3, v1
    s_lshl_b32 s3, s67, 9
    v_add_u32 v1, s3, v1
    v_add_u32 v2, 0x10000, v1
    v_add_u32 v3, 0x20000, v1
    s_mul_i32 s75, s67, {-2*256*896 & 0xffffffff}
    s_add_u32 s75, s75, {256*896}
    s_ashr_i32 s76, s75, 31
    s_mul_i32 s77, s67, 7168
    s_lshl_b32 s78, s66, 11
    s_xor_b32 s79, s78, 2048
    s_add_u32 s78, s78, {XCH}
    s_add_u32 s79, s79, {XCH}
    s_mul_i32 s7, s64, 1835008
    s_mul_i32 s3, s65, 57344
    s_add_u32 s7, s7, s3
    s_mul_i32 s3, s66, 14336
    s_add_u32 s7, s7, s3
    s_mov_b32 s6, 0x37800000
    v_mov_b32 v250, 0
    v_mov_b32 v251, 0
    v_mov_b32 v252, 0
    v_mov_b32 v253, 0x3f803f80
    """)
    stamp()
    for t in range(28):
        g.wait(vm=xl[t])
        for q in range(4):
            x = X0 + 4 * t + q
            e(f"v_dot2_f32_bf16 v250, v{x}, v253, v250")
            e(f"v_dot2_f32_bf16 v251, v{x}, v{x}, v251")
    stamp()
    for t in range(28):
        g.wait(vm=wl[t])
        for q in range(4):
            e(f"v_dot2_f32_bf16 v252, v{X0+4*t+q}, v{QA+4*t+q}, v252")
    g.wait(vm=wf)
    e("v_mov_b32 v254, 0")
    for q in range(4):
        e(f"v_dot2_f32_bf16 v254, v{244+q}, v253, v254")
    e(f"""
    v_add_f32_dpp v254, v254, v254 row_shr:1 bound_ctrl:0
    v_add_f32_dpp v254, v254, v254 row_shr:2 bound_ctrl:0
    v_add_f32_dpp v254, v254, v254 row_shr:4 bound_ctrl:0
    v_add_f32_dpp v254, v254, v254 row_shr:8 bound_ctrl:0
    v_add_f32_dpp v254, v254, v254 row_bcast:15 row_mask:0xa
    v_add_f32_dpp v254, v254, v254 row_bcast:31 row_mask:0xc
    v_readlane_b32 s4, v254, 63
    v_mov_b32 v240, v250
    v_mov_b32 v241, v251
    v_mov_b32 v242, v252
    v_permlane32_swap_b32 v250, v240
    v_permlane32_swap_b32 v251, v241
    v_permlane32_swap_b32 v252, v242
    v_add_f32 v250, v250, v240
    v_add_f32 v251, v251, v241
    v_add_f32 v252, v252, v242
    v_mul_f32 v250, {f2u(1.0/448):#x}, v250        ; mean
    v_mul_f32 v251, {f2u(1.0/448):#x}, v251
    v_fma_f32 v251, -v250, v250, v251              ; var
    v_max_f32 v251, 0, v251
    v_cvt_pk_bf16_f32 v240, v250, v251
    v_lshlrev_b32 v250, 16, v240                   ; m (bf16)
    v_and_b32 v251, s74, v240
    v_add_f32 v251, {f2u(1e-5):#x}, v251
    v_cvt_pk_bf16_f32 v251, v251, v251
    v_and_b32 v251, s74, v251
    v_sqrt_f32 v251, v251
    v_cvt_pk_bf16_f32 v251, v251, v251
    v_and_b32 v251, s74, v251
    v_rcp_f32 v241, v251
    v_mul_f32 v8, {f2u(LOG2E_16):#x}, v241
    v_mul_f32 v9, v250, v8
    v_sub_f32 v9, 0, v9
    v_fma_f32 v252, -v250, s4, v252
    v_mul_f32 v252, v252, v241                     ; r
    v_cvt_pk_bf16_f32 v252, v252, v252
    v_and_b32 v252, s74, v252
    v_cmp_eq_u32 vcc, 0, v10
    v_lshlrev_b32 v242, 3, v12
    v_lshl_add_u32 v242, v10, 2, v242
    v_cndmask_b32 v243, v251, v250, vcc
    v_lshlrev_b32 v241, 2, v12
    s_mov_b32 s3, {WS_STATS}
    s_mov_b32 s4, {WS_R}
    """)
    g.vmem("buffer_store_dword v243, v242, s[56:59], s3 offen")
    g.vmem("buffer_store_dword v252, v241, s[56:59], s4 offen")
    for t in range(2):
        for o in prep(t):
            e(o)
    stamp()

    rd_idx = {}
    xw_idx = {}
    xr_idx = {}
    def emit_reads(i):
        mf, reads, b = steps[i]
        bb = AB + 4 * (i % NB)
        for (op, off, n, base, const) in reads:
            rd_idx[i] = g.lds(f"{op} {ar(bb+off,n)}, v{base+(const>>16)} offset:{const&0xffff}")
    costs = []
    last_st_hi = [None]
    stop = {"q": 240, "s0": start["S1"] + 4, "o": O0 + 120}.get(dbg, None)
    def emit_fill(o):
        if isinstance(o, str):
            e(o)
        elif o[0] == "xw":
            xw_idx[o[1]] = g.lds(o[2])
        elif o[0] == "xr":
            xr_idx[o[1]] = g.lds(o[2])
        elif o[0] == "st":
            if last_st_hi[0] != o[3]:
                e(f"s_mov_b32 s3, {WS_PART + o[3]*4096}")
                last_st_hi[0] = o[3]
            g.vmem(o[2])
    minlead = 10 ** 9
    for gap in range(-PF, N):
        c0 = g.cost
        if gap in bars:
            nxt = min([x for x in bars if x > gap] + [10 ** 9])
            vm = 0
            for b in bufs:
                if b.cert == gap:
                    assert b.vm_last is not None and dq[dp[0] - 1][0] is not None
                    assert all(x is not b for x, _ in dq[dp[0]:]), ("DMA not issued before cert", b.name, gap)
                    vm = max(vm, b.vm_last)
                    if b.issue_gap >= 0:
                        minlead = min(minlead, gap - b.issue_gap)
                        if verbose:
                            print(b.name, "free", b.free, "issued", b.issue_gap, "cert", gap)
            lg = max(list(xw_idx.values()) + list(xr_idx.values()) + [0])
            g.wait(vm=vm if vm else None, lg=lg if lg else None)
            e("s_barrier")
            if stamps and gap in (start["S0"] - PF, O0 - PF):
                g.wait(lg=g.lg); stamp(); e("s_waitcnt lgkmcnt(0)")
        if gap + PF < N:
            emit_reads(gap + PF)
        if gap >= 0:
            issue_dma(gap, 1)
            for o in fill.get(gap, []):
                emit_fill(o)
            if gap % WEV == 0:
                g.wait(lg=rd_idx[min(gap + WEV - 1, N - 1)])
            e(steps[gap][0].replace("{A}", ar(AB + 4 * (gap % NB), 4)))
            costs.append(g.cost - c0)
        if stop is not None and gap == stop:
            break
    if stop is None:
        for o in tail:
            emit_fill(o)
    else:
        e("s_nop 7\ns_nop 7")
        e(f"""
        s_lshl_b32 s3, s2, 2
        s_add_u32 s3, s3, s66
        s_lshl_b32 s3, s3, 16
        s_add_u32 s3, s3, {WS_DBG}
        v_lshlrev_b32 v15, 4, v0
        """)
        for q in range(56):
            if q % 4 == 0 and q:
                e("s_add_u32 s3, s3, 4096")
            g.vmem(f"buffer_store_dwordx4 {vr(32+4*q,4)}, v15, s[56:59], s3 offen offset:{(q&3)*1024}")
    if stamps:
        g.wait_all()
        stamp()
        e("s_waitcnt lgkmcnt(0)")
        e(f"""
        s_lshl_b32 s3, s2, 2
        s_add_u32 s3, s3, s66
        s_lshl_b32 s3, s3, 6
        s_add_u32 s3, s3, {WS_DBG + (1<<26) - (32<<20) - (1<<20)}
        v_mov_b32 v15, 0
        """)
        for k in range(nst[0]):
            e(f"v_mov_b32 v14, s{80+2*k}")
            g.vmem(f"buffer_store_dword v14, v15, s[56:59], s3 offen offset:{4*k}")
    g.wait_all()
    e(f"{name}_exit:\ns_endpgm")
    for i in rare:
        if stop is not None and not any(l == f"{name}_back{i}:" for l in g.L):
            continue
        e(f"""
        {name}_stub{i}:
        s_mov_b32 s4, {0xff800000 if i == 0 else 0}
        s_call_b64 s[34:35], {name}_rare{i&1}
        s_branch {name}_back{i}
        """)
    for par in range(2):
        s, sn = S[par], S[1 - par]
        e(f"{name}_rare{par}:\ns_nop 7\ns_nop 7\ns_nop 7")
        d, f = T + 8, T + 9
        e(f"v_max_f32 v{d}, v{s}, v{s+1}")
        for q in range(1, 16):
            e(f"v_max3_f32 v{d}, v{d}, v{s+2*q}, v{s+2*q+1}")
        e(f"""
        v_mov_b32 v{f}, v{d}
        v_permlane32_swap_b32 v{d}, v{f}
        v_max_f32 v{d}, v{d}, v{f}
        v_max_f32 v{d}, s4, v{d}
        v_sub_f32 v{f}, 0, v{d}
        v_min_f32 v{f}, 0, v{f}
        v_exp_f32 v{f}, v{f}
        """)
        for q in range(32):
            e(f"v_sub_f32 v{s+q}, v{s+q}, v{d}")
            e(f"v_sub_f32 v{sn+q}, v{sn+q}, v{d}")
        for q in range(16):
            e(f"v_sub_f32 v{NEGM+q}, v{NEGM+q}, v{d}")
        e(f"v_mul_f32 v{VL}, v{VL}, v{f}")
        for q in range(128):
            t0 = T + (q & 3)
            e(f"v_accvgpr_read_b32 v{t0}, a{q}\nv_mul_f32 v{t0}, v{t0}, v{f}\nv_accvgpr_write_b32 a{q}, v{t0}")
        e(f"v_mov_b32 v{VCS}, 0")
        for pr in range(16):
            t0, t1 = T + 2 * (pr & 1), T + 1 + 2 * (pr & 1)
            e(f"""
            v_exp_f32 v{t0}, v{s+2*pr}
            v_exp_f32 v{t1}, v{s+2*pr+1}
            v_add_f32 v{VCS}, v{VCS}, v{t0}
            v_add_f32 v{VCS}, v{VCS}, v{t1}
            v_cvt_pk_bf16_f32 v{P[par]+pr}, v{t0}, v{t1}
            """)
        e("s_nop 7\ns_setpc_b64 s[34:35]")
    info = dict(costs=costs, minlead=minlead, start=start, O0=O0, N=N)
    return g.L, info
```

```python
from core import *
from k2 import WS_PART, WS_STATS, WS_R, WS_Y, f2u, vr

WS_SEL = WS_Y
WS_YP = WS_Y + 4096
NF = 56


def top2_wave(e, a1, a2, t1, t2, t3):
    for ctl in ["row_shr:1", "row_shr:2", "row_shr:4", "row_shr:8", "row_bcast:15 row_mask:0xa", "row_bcast:31 row_mask:0xc"]:
        bc = " bound_ctrl:0" if ctl.startswith("row_shr") else ""
        e(f"v_mov_b32 v{t1}, 0")
        e(f"v_mov_b32 v{t2}, 0")
        e(f"v_mov_b32_dpp v{t1}, v{a1} {ctl}{bc}")
        e(f"v_mov_b32_dpp v{t2}, v{a2} {ctl}{bc}")
        e(f"v_min_u32 v{t3}, v{a1}, v{t1}")
        e(f"v_max_u32 v{a1}, v{a1}, v{t1}")
        e(f"v_max3_u32 v{a2}, v{a2}, v{t2}, v{t3}")


def rnd(e, d, s):
    e(f"v_cvt_pk_bf16_f32 v{d}, v{s}, v{s}")
    e(f"v_and_b32 v{d}, s74, v{d}")


def gen_kf(name):
    g = Gen()
    e = g.e
    e(f"""
    s_cmp_ge_u32 s2, {NF}
    s_cbranch_scc1 {name}_exit
    s_load_dwordx16 s[8:23], s[0:1], 0
    s_load_dwordx8 s[24:31], s[0:1], 64
    s_load_dwordx2 s[32:33], s[0:1], 96
    v_and_b32 v1, 63, v0              ; lane
    v_lshrrev_b32 v2, 6, v0           ; wave
    v_lshrrev_b32 v3, 2, v0
    v_readfirstlane_b32 s66, v2
    v_and_b32 v4, 3, v0
    v_mul_u32_u24 v5, 3584, v3
    v_lshl_add_u32 v5, v4, 4, v5
    v_lshlrev_b32 v6, 4, v1           ; lane*16
    v_lshlrev_b32 v7, 1, v3
    s_mov_b32 s39, 0x20000
    s_mov_b32 s43, 0x20000
    s_mov_b32 s47, 0x20000
    s_mov_b32 s51, 0x20000
    s_mov_b32 s59, 0x20000
    s_mov_b32 s38, 1835008
    s_mov_b32 s42, {448*3584}
    s_mov_b32 s46, {448*3584}
    s_mov_b32 s50, {1792*896}
    s_mov_b32 s58, 0x4000000
    s_mov_b32 s74, 0xffff0000
    s_lshl_b32 s3, s2, 6
    s_lshl_b32 s4, s2, 2
    s_add_u32 s4, s4, s66
    s_mul_i32 s4, s4, {8*896}
    s_mov_b32 s5, {WS_R}
    v_cmp_gt_u32 vcc, 56, v1
    v_mov_b32 v8, 0x7fffffff
    s_waitcnt lgkmcnt(0)
    s_mov_b32 s36, s8
    s_mov_b32 s37, s9
    s_mov_b32 s40, s22
    s_mov_b32 s41, s23
    s_mov_b32 s44, s24
    s_mov_b32 s45, s25
    s_mov_b32 s48, s26
    s_mov_b32 s49, s27
    s_mov_b32 s56, s32
    s_mov_b32 s57, s33
    v_cndmask_b32 v8, v8, v6, vcc
    """)
    rl = []
    for q in range(8):
        if q == 4:
            e("s_add_u32 s5, s5, 4096")
        rl.append(g.vmem(f"buffer_load_dwordx4 {vr(16+4*q,4)}, v6, s[56:59], s5 offen offset:{(q&3)*1024}"))
    W = 64
    wl = []
    for p in range(7):
        e(f"s_add_u32 s6, s3, {p*64*3584}")
        wl.append(g.vmem(f"buffer_load_dwordx4 {vr(W+8*p,4)}, v5, s[40:43], s6 offen"))
        wl.append(g.vmem(f"buffer_load_dwordx4 {vr(W+8*p+4,4)}, v5, s[44:47], s6 offen"))
    D = 120
    dl = []
    for r in range(8):
        if r == 4:
            e(f"s_add_u32 s4, s4, {4*896}")
        dl.append(g.vmem(f"buffer_load_dwordx4 {vr(D+4*r,4)}, v8, s[48:51], s4 offen offset:{(r&3)*896}"))
    e("v_lshlrev_b32 v9, 2, v1\nv_sub_u32 v9, 2047, v9\nv_mov_b32 v10, 0\nv_mov_b32 v11, 0")
    for q in range(8):
        g.wait(vm=rl[q])
        for k in range(4):
            x = 16 + 4 * q + k
            e(f"""
            v_ashrrev_i32 v12, 31, v{x}
            v_or_b32 v12, 0x80000000, v12
            v_xor_b32 v12, v12, v{x}
            v_and_b32 v12, s74, v12
            v_subrev_u32 v13, {q*256+k}, v9
            v_or_b32 v12, v12, v13
            v_min_u32 v13, v10, v12
            v_max_u32 v10, v10, v12
            v_max_u32 v11, v11, v13
            """)
    top2_wave(e, 10, 11, 12, 13, 14)
    e(f"""
    v_readlane_b32 s60, v10, 63
    v_readlane_b32 s61, v11, 63
    s_nop 1
    s_and_b32 s62, s60, 0x7ff
    s_and_b32 s63, s61, 0x7ff
    s_sub_u32 s62, 2047, s62          ; tok0
    s_sub_u32 s63, 2047, s63          ; tok1
    s_mul_i32 s64, s62, 896
    s_mul_i32 s65, s63, 896
    s_lshl_b32 s67, s62, 3
    s_lshl_b32 s68, s63, 3
    s_add_u32 s67, s67, {WS_STATS}
    s_add_u32 s68, s68, {WS_STATS}
    v_mov_b32 v9, 0
    """)
    XV = 16
    for tk in range(2):
        xl = None
        for p in range(7):
            xl = g.vmem(f"buffer_load_ushort v{XV+7*tk+p}, v7, s[36:39], s{64+tk} offen offset:{128*p}")
        sl = g.vmem(f"buffer_load_dwordx2 {vr(32+2*tk,2)}, v9, s[56:59], s{67+tk} offen")
    g.wait(vm=sl)
    for tk in range(2):
        e(f"v_rcp_f32 v{36+tk}, v{33+2*tk}")
        for p in range(7):
            x = XV + 7 * tk + p
            e(f"v_lshlrev_b32 v{x}, 16, v{x}")
            e(f"v_sub_f32 v{x}, v{x}, v{32+2*tk}")
            rnd(e, x, x)
            e(f"v_mul_f32 v{x}, v{x}, v{36+tk}")
            rnd(e, x, x)
    A = 160
    for p in range(7):
        for mt in range(2):
            w = W + 8 * p + 4 * mt
            for q in range(4):
                e(f"v_lshlrev_b32 v40, 16, v{w+q}")
                e(f"v_and_b32 v41, s74, v{w+q}")
                for tk in range(2):
                    for h in range(2):
                        a = A + 16 * mt + 8 * tk + 2 * q + h
                        if p == 0:
                            e(f"v_mul_f32 v{a}, v{40+h}, v{XV+7*tk+p}")
                        else:
                            e(f"v_fmac_f32 v{a}, v{40+h}, v{XV+7*tk+p}")
    for ctl in ["row_shr:4", "row_shr:8"]:
        for a in range(32):
            e(f"v_add_f32_dpp v{A+a}, v{A+a}, v{A+a} {ctl} bound_ctrl:0")
    e(f"""
    v_lshrrev_b32 v42, 4, v0          ; contributor 0..15
    v_lshlrev_b32 v42, 9, v42
    v_lshl_add_u32 v42, v4, 7, v42
    v_and_b32 v43, 12, v0
    v_cmp_eq_u32 vcc, 12, v43
    s_nop 1
    s_and_saveexec_b64 s[70:71], vcc
    """)
    for q in range(8):
        g.lds(f"ds_write_b128 v42, {vr(A+4*q,4)} offset:{16*q}")
    e("s_mov_b64 exec, s[70:71]")
    g.wait(lg=g.lg)
    e("s_barrier")
    e(f"""
    v_bfe_u32 v42, v1, 3, 2
    v_lshlrev_b32 v42, 7, v42
    v_lshrrev_b32 v43, 5, v1
    v_lshl_add_u32 v42, v43, 5, v42
    v_and_b32 v43, 7, v1
    v_lshl_add_u32 v42, v43, 2, v42
    """)
    for c in range(16):
        g.lds(f"ds_read_b32 v{A+c}, v42 offset:{512*c}")
        g.lds(f"ds_read_b32 v{A+16+c}, v42 offset:{512*c+64}")
    g.wait(lg=g.lg)
    for c in range(1, 16):
        e(f"v_add_f32 v{A}, v{A}, v{A+c}")
        e(f"v_add_f32 v{A+16}, v{A+16}, v{A+16+c}")
    rnd(e, 44, A)
    rnd(e, 45, A + 16)
    e(f"""
    v_mul_f32 v46, {f2u(-1.4426950408889634):#x}, v44
    v_exp_f32 v46, v46
    v_add_f32 v46, 1.0, v46
    v_rcp_f32 v46, v46
    v_mul_f32 v44, v44, v46
    """)
    rnd(e, 44, 44)
    e("v_mul_f32 v44, v44, v45")
    rnd(e, 44, 44)
    e("s_lshl_b32 s66, s66, 3")
    g.wait(vm=dl[-1])
    for r in range(8):
        e(f"s_add_u32 s6, s66, {r}")
        e(f"s_add_u32 s7, s66, {32+r}")
        e("v_readlane_b32 s72, v44, s6")
        e("v_readlane_b32 s73, v44, s7")
        for q in range(4):
            e(f"v_lshlrev_b32 v40, 16, v{D+4*r+q}")
            e(f"v_and_b32 v41, s74, v{D+4*r+q}")
            for tk in range(2):
                for h in range(2):
                    a = A + 8 * tk + 2 * q + h
                    if r == 0:
                        e(f"v_mul_f32 v{a}, s{72+tk}, v{40+h}")
                    else:
                        e(f"v_fmac_f32 v{a}, s{72+tk}, v{40+h}")
    e(f"""
    v_lshlrev_b32 v42, 5, v1
    v_lshl_add_u32 v42, v2, 12, v42
    """)
    for tk in range(2):
        for q in range(2):
            g.lds(f"ds_write_b128 v42, {vr(A+8*tk+4*q,4)} offset:{8192+2048*tk+16*q}")
    g.wait(lg=g.lg)
    e("s_barrier")
    e("v_lshlrev_b32 v42, 4, v0")
    for w in range(4):
        g.lds(f"ds_read_b128 {vr(A+4*w,4)}, v42 offset:{8192+4096*w}")
    g.wait(lg=g.lg)
    for w in range(1, 4):
        for q in range(4):
            e(f"v_add_f32 v{A+q}, v{A+q}, v{A+4*w+q}")
    e(f"""
    s_lshl_b32 s3, s2, 12
    s_add_u32 s3, s3, {WS_YP}
    """)
    g.vmem(f"buffer_store_dwordx4 {vr(A,4)}, v42, s[56:59], s3 offen")
    e(f"""
    s_and_b32 s60, s60, s74
    s_and_b32 s61, s61, s74
    v_mov_b32 v50, s60
    v_mov_b32 v51, s61
    """)
    for v in (50, 51):
        e(f"""
        v_ashrrev_i32 v52, 31, v{v}
        v_not_b32 v52, v52
        v_or_b32 v52, 0x80000000, v52
        v_xor_b32 v{v}, v{v}, v52
        v_and_b32 v{v}, s74, v{v}
        v_mul_f32 v{v}, {f2u(-1.4426950408889634):#x}, v{v}
        v_exp_f32 v{v}, v{v}
        v_add_f32 v{v}, 1.0, v{v}
        v_rcp_f32 v{v}, v{v}
        """)
        rnd(e, v, v)
    e(f"""
    v_mov_b32 v48, s62
    v_mov_b32 v49, s63
    s_mov_b32 s3, {WS_SEL}
    """)
    g.vmem(f"buffer_store_dwordx4 v[48:51], v9, s[56:59], s3 offen")
    g.wait_all()
    e(f"{name}_exit:\ns_endpgm")
    return g.L


def gen_k3(name):
    g = Gen()
    e = g.e
    e(f"""
    s_cmp_ge_u32 s2, 256
    s_cbranch_scc1 {name}_exit
    s_load_dwordx2 s[8:9], s[0:1], 0
    s_load_dwordx2 s[28:29], s[0:1], 80
    s_load_dwordx2 s[32:33], s[0:1], 96
    v_and_b32 v1, 7, v0
    v_lshrrev_b32 v2, 3, v0           ; piece P 0..55
    s_lshl_b32 s3, s2, 3
    v_add_u32 v3, s3, v1              ; token
    v_mul_u32_u24 v4, 896, v3
    v_lshl_add_u32 v4, v2, 4, v4
    ; partial offset: tb*57344 + (th*2+hp)*14336 + ((P%28)>>1)*1024 + ((P&1)*32 + n)*16
    v_lshrrev_b32 v5, 5, v3           ; tb*2+th
    v_mul_u32_u24 v5, 28672, v5
    v_lshrrev_b32 v6, 1, v2
    v_lshl_add_u32 v5, v6, 10, v5
    v_and_b32 v6, 1, v2
    v_lshl_add_u32 v5, v6, 9, v5
    v_and_b32 v6, 31, v3
    v_lshl_add_u32 v5, v6, 4, v5
    v_lshlrev_b32 v7, 3, v3
    s_mov_b32 s39, 0x20000
    s_mov_b32 s43, 0x20000
    s_mov_b32 s59, 0x20000
    s_mov_b32 s38, 1835008
    s_mov_b32 s42, 1835008
    s_mov_b32 s58, 0x4000000
    s_mov_b32 s74, 0xffff0000
    s_mov_b32 s4, {WS_STATS}
    s_mov_b32 s5, {WS_PART}
    s_waitcnt lgkmcnt(0)
    s_add_u32 s34, s32, {WS_SEL}
    s_addc_u32 s35, s33, 0
    s_load_dwordx4 s[60:63], s[34:35], 0
    s_mov_b32 s36, s8
    s_mov_b32 s37, s9
    s_mov_b32 s40, s28
    s_mov_b32 s41, s29
    s_mov_b32 s56, s32
    s_mov_b32 s57, s33
    """)
    xl = g.vmem("buffer_load_dwordx4 v[8:11], v4, s[36:39], 0 offen")
    sl = g.vmem("buffer_load_dwordx2 v[12:13], v7, s[56:59], s4 offen")
    pl = []
    for k in range(8):
        pl.append(g.vmem(f"buffer_load_dwordx4 {vr(16+4*k,4)}, v5, s[56:59], s5 offen"))
        if k < 7:
            e("s_add_u32 s5, s5, 1835008")
    g.wait(vm=sl)
    e("v_rcp_f32 v14, v13")
    for q in range(4):
        e(f"v_lshlrev_b32 v{48+2*q}, 16, v{8+q}")
        e(f"v_and_b32 v{49+2*q}, s74, v{8+q}")
    for q in range(8):
        e(f"v_sub_f32 v{56+q}, v{48+q}, v12")
        rnd(e, 56 + q, 56 + q)
        e(f"v_mul_f32 v{56+q}, v{56+q}, v14")
        rnd(e, 56 + q, 56 + q)
    e(f"""
    s_waitcnt lgkmcnt(0)
    s_lshr_b32 s64, s60, 3
    s_lshr_b32 s65, s61, 3
    s_cmp_eq_u32 s64, s2
    s_cbranch_scc1 {name}_sel
    s_cmp_eq_u32 s65, s2
    s_cbranch_scc1 {name}_sel
    {name}_back:
    """)
    for q in range(8):
        e(f"v_mul_f32 v{64+q}, {f2u(-1.4426950408889634):#x}, v{56+q}")
        e(f"v_exp_f32 v{64+q}, v{64+q}")
    for q in range(8):
        e(f"v_add_f32 v{64+q}, 1.0, v{64+q}")
        e(f"v_rcp_f32 v{64+q}, v{64+q}")
    for q in range(8):
        e(f"v_mul_f32 v{56+q}, v{56+q}, v{64+q}")
        rnd(e, 56 + q, 56 + q)
    for k in range(8):
        g.wait(vm=pl[k])
        for q in range(4):
            if k == 0:
                e(f"v_lshlrev_b32 v{64+2*q}, 16, v{16+q}")
                e(f"v_and_b32 v{65+2*q}, s74, v{16+q}")
            else:
                e(f"v_lshlrev_b32 v72, 16, v{16+4*k+q}")
                e(f"v_and_b32 v73, s74, v{16+4*k+q}")
                e(f"v_add_f32 v{64+2*q}, v{64+2*q}, v72")
                e(f"v_add_f32 v{65+2*q}, v{65+2*q}, v73")
    for q in range(8):
        rnd(e, 64 + q, 64 + q)
        e(f"v_mul_f32 v{64+q}, v{64+q}, v{56+q}")
        rnd(e, 64 + q, 64 + q)
        e(f"v_add_f32 v{64+q}, v{64+q}, v{48+q}")
    for q in range(4):
        e(f"v_cvt_pk_bf16_f32 v{8+q}, v{64+2*q}, v{65+2*q}")
    g.vmem("buffer_store_dwordx4 v[8:11], v4, s[40:43], 0 offen")
    e(f"{name}_exit:\ns_endpgm")
    e(f"""
    {name}_sel:
    v_cmp_eq_u32 s[66:67], s60, v3
    v_cmp_eq_u32 s[68:69], s61, v3
    v_lshlrev_b32 v74, 5, v2          ; piece*32 B
    v_add_u32 v75, 2048, v74
    v_mov_b32 v76, s62
    v_mov_b32 v77, s63
    v_cndmask_b32 v74, v74, v75, s[68:69]
    v_cndmask_b32 v76, v76, v77, s[68:69]
    s_or_b64 s[66:67], s[66:67], s[68:69]
    s_mov_b32 s5, {WS_YP}
    s_mov_b32 s6, 0
    """)
    for q in range(8):
        e(f"v_mov_b32 v{64+q}, 0")
    e(f"{name}_loop:")
    for k in range(8):
        e(f"buffer_load_dwordx4 {vr(80+8*k,4)}, v74, s[56:59], s5 offen")
        e(f"buffer_load_dwordx4 {vr(84+8*k,4)}, v74, s[56:59], s5 offen offset:16")
        e("s_add_u32 s5, s5, 4096")
    e("s_waitcnt vmcnt(0)")
    for k in range(8):
        for q in range(8):
            e(f"v_add_f32 v{64+q}, v{64+q}, v{80+8*k+q}")
    e(f"""
    s_add_u32 s6, s6, 1
    s_cmp_lt_u32 s6, {NF//8}
    s_cbranch_scc1 {name}_loop
    """)
    for q in range(8):
        rnd(e, 64 + q, 64 + q)
        e(f"v_mul_f32 v{64+q}, v{64+q}, v76")
        rnd(e, 64 + q, 64 + q)
        e(f"v_add_f32 v{64+q}, v{64+q}, v{56+q}")
        rnd(e, 64 + q, 64 + q)
        e(f"v_cndmask_b32 v{56+q}, v{56+q}, v{64+q}, s[66:67]")
    e(f"s_branch {name}_back")
    return g.L
```

```python
import sys
sys.path.insert(0, 'dev')
from build import *
import kf
def make(path, **kw):
    L, info = k2.gen_k2("k2_kernel", **kw)
    src = assemble([("k2_kernel", 256, 256, 163840, L, 512, 256),
                    ("kf_kernel", 56, 256, 32768, kf.gen_kf("kf_kernel"), 256, 256),
                    ("k3_kernel", 256, 448, 0, kf.gen_k3("k3_kernel"), 160, 160)], pad_to=1024)
    open(path, "w").write(src)
    return info
if __name__ == "__main__":
    make("recurrent_scan__sliding_block_cached__moe_arch_mod__prompt.s")
```

```python
import re
from asmgen import align_fix, align_dp, sizes_of

TRANS = ("v_exp_f32", "v_log_f32", "v_rcp_f32", "v_rsq_f32", "v_sqrt_f32")


def regs_of(tok):
    tok = tok.strip()
    tok = tok.lstrip("-").strip("|")
    m = re.fullmatch(r"([vas])\[(\d+):(\d+)\]", tok)
    if m:
        return [(m.group(1), i) for i in range(int(m.group(2)), int(m.group(3)) + 1)]
    m = re.fullmatch(r"([vas])(\d+)", tok)
    if m:
        return [(m.group(1), int(m.group(2)))]
    if tok in ("vcc", "vcc_lo", "vcc_hi"):
        return [("s", "vcc")]
    if tok == "m0":
        return [("s", "m0")]
    if tok in ("exec", "exec_lo", "exec_hi"):
        return [("s", "exec")]
    return []


class Ins:
    __slots__ = ("text", "op", "kind", "dst", "src", "passes", "A", "B", "C", "trans", "dot", "wide", "sdwa", "nop", "dpp")

    def __init__(self, text):
        self.text = text
        c = text.split(";")[0].strip()
        parts = c.split(None, 1)
        op = parts[0]
        for suf in ("_e32", "_e64"):
            if op.endswith(suf):
                op = op[: -len(suf)]
        self.op = op
        rest = parts[1] if len(parts) > 1 else ""
        brk = " ".join(re.findall(r"\s(\w+:\[[^\]]*\])", rest))
        rest = re.sub(r"\s\w+:\[[^\]]*\]", "", rest)
        ops = [o.strip() for o in rest.split(",")]
        mods = ""
        if ops:
            sp = ops[-1].split(None, 1)
            if len(sp) > 1:
                ops[-1] = sp[0]
                mods = sp[1]
        mods += " " + brk
        self.dst = []
        self.src = []
        self.passes = 0
        self.A = self.B = self.C = []
        self.trans = op in TRANS
        self.dot = op.startswith("v_dot")
        self.wide = False
        self.sdwa = "sdwa" in op or "dst_sel" in mods
        self.dpp = "dpp" in op or "row_" in mods or "quad_perm" in mods
        self.nop = 0
        R = [regs_of(o) for o in ops]
        if op.startswith("v_mfma"):
            self.kind = "mfma"
            self.passes = 8 if "32x32x16" in op else 4
            self.dst = R[0]
            self.A, self.B, self.C = R[1], R[2], R[3]
            self.src = R[1] + R[2] + R[3]
        elif op.startswith("v_"):
            self.kind = "valu"
            if op.startswith("v_permlane") and "swap" in op:
                self.dst = R[0] + R[1]
                self.src = R[0] + R[1]
            elif op.startswith("v_cmp"):
                self.dst = R[0]
                self.src = sum(R[1:], [])
            elif "_co_" in op:
                self.dst = R[0] + R[1]
                self.src = sum(R[2:], [])
            elif op == "v_nop":
                pass
            else:
                self.dst = R[0]
                self.src = sum(R[1:], [])
                if op.startswith("v_fmac") or op.startswith("v_dot2c") or self.dpp:
                    self.src = self.src + R[0]
                if op == "v_cndmask_b32" and len(ops) == 3:
                    self.src = self.src + [("s", "vcc")]
        elif op.startswith("ds_read") or op.startswith("ds_bpermute") or op.startswith("ds_swizzle"):
            self.kind = "ds"
            self.dst = R[0]
            self.src = sum(R[1:], [])
        elif op.startswith("ds_"):
            self.kind = "ds"
            self.src = sum(R, [])
        elif op.startswith("buffer_load") or op.startswith("global_load"):
            self.kind = "vmem"
            if re.search(r"\blds\b", mods) or "_lds_" in op:
                self.src = sum(R, []) + [("s", "m0")]
            else:
                self.dst = R[0]
                self.src = sum(R[1:], [])
        elif op.startswith("buffer_") or op.startswith("global_"):
            self.kind = "vmem"
            self.src = sum(R, [])
            if "atomic" in op and re.search(r"\bsc0\b", mods):
                self.dst = R[0]
            if "x4" in op or "x3" in op:
                self.wide = True
                self.A = R[0] if op.startswith("buffer_") else R[1]
        elif op == "s_nop":
            self.kind = "nop"
            self.nop = int(ops[0])
        elif op.startswith("s_"):
            self.kind = "salu"
            if op.startswith(("s_waitcnt", "s_barrier", "s_branch", "s_cbranch", "s_endpgm", "s_cmp", "s_setprio", "s_sleep", "s_setpc", "s_bitcmp")):
                self.src = sum(R, [])
            else:
                self.dst = R[0]
                self.src = sum(R[1:], [])
        else:
            raise ValueError("unknown instr " + text)


def is_ins(l):
    l = l.strip()
    return bool(l) and not l.startswith(";") and not l.startswith(".") and not l.endswith(":")


def hazard_fix(lines, verbose=False):
    out = []
    t = 0
    last_mfma_t = -100
    last_mfma_p = 0
    wr = {}
    crd = {}
    strd = {}
    nfix = 0
    for l in lines:
        if not is_ins(l):
            out.append(l)
            continue
        I = Ins(l)
        tt = t
        if I.kind == "mfma":
            tt = max(tt, last_mfma_t + last_mfma_p)
        need = tt

        def req(tp, ws):
            nonlocal need
            need = max(need, tp + 1 + ws)

        for r in I.src:
            if r not in wr:
                continue
            tp, P = wr[r]
            if P.kind == "mfma":
                big = 12 if P.passes == 8 else 8
                if I.kind == "mfma":
                    if r in I.A or r in I.B:
                        req(tp, big)
                    if r in I.C:
                        if I.C == P.dst and I.passes == P.passes:
                            pass
                        else:
                            req(tp, 10 if P.passes == 8 else 6)
                else:
                    req(tp, big)
            elif P.kind == "valu":
                if r[0] == "s":
                    if I.kind == "valu":
                        req(tp, 4 if I.op.startswith(("v_readlane", "v_writelane")) else 2)
                    elif I.kind in ("vmem", "ds"):
                        req(tp, 5)
                    elif I.kind == "salu":
                        req(tp, 1)
                    if r[1] == "exec":
                        req(tp, 5)
                else:
                    if P.dot:
                        if I.op == P.op and r == (I.src[-1] if True else None) and r not in I.src[:-1]:
                            pass
                        else:
                            req(tp, 3)
                    if I.kind == "mfma":
                        req(tp, 2)
                    elif I.kind == "valu":
                        if I.op.startswith("v_permlane") or I.dpp:
                            req(tp, 2)
                        if I.op.startswith(("v_readfirstlane", "v_readlane")):
                            req(tp, 1)
                    if P.trans or P.sdwa:
                        req(tp, 1)
            elif P.kind == "salu":
                if r[1] == "m0" and I.kind in ("vmem", "ds"):
                    req(tp, 1)
        for r in I.dst:
            if r in wr:
                tp, P = wr[r]
                if P.kind == "mfma" and I.kind != "mfma":
                    req(tp, 12 if P.passes == 8 else 8)
                if P.kind == "mfma" and I.kind == "mfma" and not (I.C == P.dst):
                    req(tp, 10 if P.passes == 8 else 6)
                if P.kind == "valu" and P.dot and not (I.op == P.op):
                    req(tp, 3)
            if r in crd and I.kind != "mfma":
                tp, p = crd[r]
                req(tp, 7 if p == 8 else 3)
            if r in strd:
                req(strd[r], 2)
        if need > tt:
            n = need - t
            if verbose:
                print("hazard: +%d before %s" % (n, l))
            nfix += 1
            while n > 0:
                k = min(n, 8)
                out.append("s_nop %d" % (k - 1))
                n -= k
            tt = need
        out.append(l)
        if I.kind == "nop":
            t = tt + 1 + I.nop
        else:
            t = tt + 1
        if I.kind == "mfma":
            last_mfma_t, last_mfma_p = tt, I.passes
            for r in I.C:
                crd[r] = (tt, I.passes)
        if I.wide:
            for r in I.A:
                strd[r] = tt
        for r in I.dst:
            wr[r] = (tt, I)
    return out, nfix


class Gen:
    def __init__(self):
        self.L = []
        self.vm = 0
        self.lg = 0
        self.vm_done = 0
        self.lg_done = 0
        self.cost = 0

    def e(self, s):
        for l in s.strip("\n").split("\n"):
            l = l.strip()
            if l:
                self.L.append(l)
                if is_ins(l):
                    op = l.split()[0]
                    self.cost += 8 if (op.startswith(TRANS) or op.startswith("v_mfma")) else 4

    def vmem(self, s):
        self.e(s)
        self.vm += 1
        return self.vm

    def lds(self, s):
        self.e(s)
        self.lg += 1
        return self.lg

    def wait(self, vm=None, lg=None):
        parts = []
        if vm is not None and vm > self.vm_done:
            n = self.vm - vm
            if n <= 63:
                parts.append("vmcnt(%d)" % n)
                self.vm_done = vm
            else:
                parts.append("vmcnt(63)")
                self.vm_done = self.vm - 63
        if lg is not None and lg > self.lg_done:
            n = min(self.lg - lg, 15)
            parts.append("lgkmcnt(%d)" % n)
            self.lg_done = self.lg - n
        if parts:
            self.e("s_waitcnt " + " ".join(parts))

    def wait_all(self):
        self.e("s_waitcnt vmcnt(0) lgkmcnt(0)")
        self.vm_done = self.vm
        self.lg_done = self.lg


def finalize(lines, verbose=False):
    l2, nfix = hazard_fix(lines, verbose)
    l3, nn = align_dp(l2)
    l4, nfix2 = hazard_fix(l3)
    assert nfix2 == 0
    l3 = [x.split(";")[0].rstrip() for x in l3]
    return l3, nfix, nn


SCC_W = ("s_add_", "s_sub_", "s_addc", "s_subb", "s_cmp", "s_lshl", "s_lshr", "s_and_", "s_or_", "s_xor_", "s_min_", "s_max_",
         "s_bfe", "s_bitcmp", "s_ashr", "s_andn2", "s_orn2", "s_not", "s_abs", "s_bcnt", "s_addk", "s_mulk_")
SCC_R = ("s_cbranch_scc", "s_addc", "s_subb", "s_cselect")

def verify_seqs(lines, show=True, stop_at="s_endpgm"):
    lastw = {}
    seql = {}
    ext = {}
    errs = 0
    for n, l in enumerate(lines):
        if not is_ins(l):
            continue
        if l.startswith(stop_at):
            break
        I = Ins(l)
        m = re.search(r";\s*@(\S+)", l)
        tag = m.group(1) if m else None
        src = list(I.src)
        dst = list(I.dst)
        if I.op.startswith(SCC_R):
            src.append(("s", "scc"))
        if I.op.startswith(SCC_W):
            dst.append(("s", "scc"))
        if I.op.startswith("s_cbranch_vcc"):
            src.append(("s", "vcc"))
        if tag:
            d = seql.setdefault(tag, {})
            for r in src:
                if r in d:
                    if lastw.get(r) != d[r]:
                        print("CLOBBER", tag, r, "|", l, "| by", lines[lastw[r]])
                        errs += 1
                else:
                    w = lastw.get(r)
                    ext.setdefault(re.sub(r"\d+", "#", tag), {}).setdefault(r, set()).add(lines[w] if w is not None else "entry")
            for r in dst:
                d[r] = n
        for r in dst:
            lastw[r] = n
    if show:
        for t, dd in ext.items():
            grp = {}
            for r, ws in dd.items():
                small = r[0] == "s" or (r[0] == "v" and (r[1] < 32 or r[1] >= 240)) or (r[0] == "a" and r[1] >= 224)
                for w in ws:
                    m = re.search(r";\s*@(\S+)", w)
                    if small:
                        key = w.split(";")[0].strip() + (" @" + m.group(1) if m else "")
                    else:
                        key = re.sub(r"\d+", "#", m.group(1)) + ":" + w.split()[0] if m else "pro:" + w.split()[0]
                    grp.setdefault(key, set()).add(r)
            print("== seq", t)
            for k, rs in grp.items():
                rs = sorted(rs, key=lambda x: (x[0], str(x[1]).zfill(4)))
                print("    %s%s..%s%s (%d) <- %s" % (rs[0][0], rs[0][1], rs[-1][0], rs[-1][1], len(rs), k))
    return errs
```

```python
import sys
sys.path.insert(0, 'dev')
from core import *
import os, importlib
k2 = importlib.import_module(os.environ.get("K2", "k2b"))
KN = "recurrent_scan__sliding_block_cached__moe_arch_mod__prompt"

def kd(name, vgpr, acc):
    return f"""
.p2align 6
.amdhsa_kernel {name}
  .amdhsa_next_free_vgpr {vgpr}
  .amdhsa_next_free_sgpr 102
  .amdhsa_accum_offset {acc}
  .amdhsa_group_segment_fixed_size 0
  .amdhsa_kernarg_size 104
  .amdhsa_user_sgpr_count 2
  .amdhsa_user_sgpr_kernarg_segment_ptr 1
  .amdhsa_system_sgpr_workgroup_id_x 1
.end_amdhsa_kernel
"""

def assemble(kernels, pad_to=None):
    s = ""
    if len(kernels) == 1:
        n, grid, block, lds, *_ = kernels[0]
        s += f"; @launch grid=({grid},1,1) block=({block},1,1) lds={lds}\n"
    else:
        for n, grid, block, lds, *_ in kernels:
            s += f"; @launch kernel={n} grid=({grid},1,1) block=({block},1,1) lds={lds}\n"
    s += '.amdgcn_target "amdgcn-amd-amdhsa--gfx950"\n.text\n'
    for n, grid, block, lds, lines, vg, acc in kernels:
        l, nfix, nn = finalize(lines)
        print(f"{n}: {len(l)} lines, hazard fixes {nfix}, align nops {nn}", file=sys.stderr)
        s += f".globl {n}\n.p2align 8\n.type {n},@function\n{n}:\n" + "\n".join(l) + "\n"
    s += ".p2align 8\n" + f".fill {pad_to or 4096}, 4, 0xbf800000\n"
    s += '.section .rodata,"a"\n'
    for n, grid, block, lds, lines, vg, acc in kernels:
        s += kd(n, vg, acc)
    return s

if __name__ == "__main__":
    dbg = sys.argv[1] if len(sys.argv) > 1 else None
    if dbg == "none": dbg = None
    kw = eval("dict(" + os.environ.get("KW", "") + ")")
    L, info = k2.gen_k2(KN + "_kernel", dbg=dbg, verbose=len(sys.argv) > 2, **kw)
    assert verify_seqs(L, show=False) == 0
    c = info["costs"]
    import numpy as np
    c = np.array(c)
    print("minlead", info["minlead"], "mean cost", c.mean(), "sum max(8,c)", np.maximum(c, 8).sum(), "over", (c > 8).sum())
    for a in range(0, len(c), 32):
        print(a, " ".join("%2d" % x for x in c[a:a+32]))
    src = assemble([(KN + "_kernel", 256, 256, 163840, L, 512, 256)], pad_to=(16384 if dbg else 4096))
    open("k2.s", "w").write(src)
```

```python
import sys
from build import *
def mk(path, **kw):
    L, info = k2.gen_k2(KN + "_kernel", **kw)
    assert verify_seqs(L, show=False) == 0
    open(path, "w").write(assemble([(KN + "_kernel", 256, 256, 163840, L, 512, 256)], pad_to=4096))
    return info
if __name__ == "__main__":
    i = mk("st.s", stamps=True, FFN=False)
    print(i["bars"])
    mk("st2.s", stamps=True, FFN=False, DSPQ=2.0)
    mk("st3.s", stamps={"start","stats","g43","g91","g139","g187","S0","g283"}, FFN=False)
    mk("st4.s", stamps={"start","stats","g43","g91","g139","g187","S0","g283"}, FFN=False, DSPQ=2.0)
    mk("st5.s", stamps={"start","O0","g787","g843","g885","g911","tail","end"}, FFN=False)
```

```python
import os, sys, json
os.environ.setdefault("K2", "k7")
from mk_st import *
def mkt(path, **kw):
    i = mk(path, trace=True, **kw)
    json.dump(i["trl"], open(path + ".json", "w"))
if __name__ == "__main__":
    for a in sys.argv[1:]:
        p, _, kw = a.partition(":")
        mkt(p, **eval("dict(" + kw + ")"))
```
